```python
import torch

def _softmax(x, axis=-1):
    return torch.softmax(x, dim=axis)
def _gelu(x):
    return torch.nn.functional.gelu(x, approximate="tanh")
def _silu(x):
    return torch.nn.functional.silu(x)
def _sigmoid(x):
    return torch.sigmoid(x)
def _layernorm(x, axis=-1, eps=1e-5):
    m = x.mean(dim=axis, keepdim=True)
    v = x.var(dim=axis, keepdim=True, unbiased=False)
    return (x - m) / torch.sqrt(v + eps)
def _scatter_add(tgt, idx, src, axis=0):
    return tgt.clone().index_add_(axis, idx, src)
def _segment_sum(src, seg, n):
    out = torch.zeros((n,) + src.shape[1:], dtype=src.dtype)
    return out.index_add_(0, seg, src)
def _pad(x, pw):
    flat = tuple(v for pair in reversed(pw) for v in pair)
    return torch.nn.functional.pad(x, flat)

kernel_name = 'standalone__mha_softmax__sampling'

def setup_inputs():

    _w = (lambda a: (lambda t: t.to(torch.bfloat16) if t.is_floating_point() else t)(torch.as_tensor(a)))
    B, H, Sq, Sk, D = 8, 32, 4, 2048, 192
    return {
        "q": _w((lambda *s: torch.randn(*s, dtype=torch.bfloat16) * 0.8)(B, H, Sq, D)),
        "k": _w((lambda *s: torch.randn(*s, dtype=torch.bfloat16) * 0.8)(B, H, Sk, D)),
        "v": _w((lambda *s: torch.randn(*s, dtype=torch.bfloat16) * 0.05)(B, H, Sk, D)),
    }

def reference(q, k, v):
    scale = q.shape[-1] ** -0.5
    scores = torch.einsum("bhqd,bhkd->bhqk", q, k) * scale
    p = _softmax(scores, axis=-1)
    return torch.einsum("bhqk,bhkd->bhqd", p, v)
```

```python
import sys
from build import build
KN = "standalone__mha_softmax__sampling_kernel"
HDRC = open("standalone__mha_softmax__sampling.s.ref").read().split("; Override launch")[0]
HDR = """; @launch grid=(%d,1,1) block=(%d,1,1) lds=%d
.amdgcn_target "amdgcn-amd-amdhsa--gfx950"
.text
.globl standalone__mha_softmax__sampling_kernel
.p2align 8
.type standalone__mha_softmax__sampling_kernel,@function
standalone__mha_softmax__sampling_kernel:
"""
FTR = """
s_endpgm
.section .rodata,"a"
.p2align 6
.amdhsa_kernel standalone__mha_softmax__sampling_kernel
  .amdhsa_next_free_vgpr %d
  .amdhsa_next_free_sgpr 40
  .amdhsa_accum_offset %d
  .amdhsa_group_segment_fixed_size 0
  .amdhsa_kernarg_size 48
  .amdhsa_user_sgpr_count 2
  .amdhsa_user_sgpr_kernarg_segment_ptr 1
  .amdhsa_system_sgpr_workgroup_id_x 1
  .amdhsa_float_denorm_mode_32 3
  .amdhsa_float_denorm_mode_16_64 3
.end_amdhsa_kernel
"""
FULL = "row_mask:0xf bank_mask:0xf"
def gen(name, NW=8, R=2, kflags="nt", vflags="nt", inter=True, ldsmin=0, path=None):
    o = []
    e = o.append
    LANE, KOFF, VA, VB, MK0, MK1, M, MC, L, AL, T, U, T2 = 1, 2, 3, 4, 5, 6, 7, 8, 9, 10, 11, 12, 13
    S, P, X, ACC, Q, RING = 16, 20, 24, 32, 56, 80
    def r4(b): return "v[%d:%d]" % (b, b + 3)
    def r2(b): return "v[%d:%d]" % (b, b + 1)
    e("  s_cmp_ge_u32 s2, 256")
    e("  s_cbranch_scc1 L_end")
    e("  s_load_dwordx8 s[4:11], s[0:1], 0          ; q k v out")
    e("  v_lshrrev_b32 v14, 6, v0")
    e("  v_and_b32 v%d, 63, v0" % LANE)
    e("  v_readfirstlane_b32 s3, v14")
    e("  v_and_b32 v14, 15, v%d                     ; n" % LANE)
    e("  v_lshrrev_b32 v15, 4, v%d                  ; g" % LANE)
    e("  v_mul_u32_u24 v%d, 384, v14" % KOFF)
    e("  v_lshl_add_u32 v%d, v15, 4, v%d" % (KOFF, KOFF))
    e("  v_and_b32 v%d, 3, v14" % T)
    e("  v_mul_u32_u24 v%d, 384, v%d" % (T2, T))
    e("  v_lshl_add_u32 v%d, v15, 4, v%d" % (T2, T2))
    e("  v_mul_u32_u24 v%d, 1536, v15" % VA)
    e("  v_lshrrev_b32 v%d, 3, v14" % T)
    e("  v_mul_u32_u24 v%d, 384, v%d" % (T, T))
    e("  v_add_u32 v%d, v%d, v%d" % (VB, T, VA))
    e("  v_and_b32 v%d, 7, v14" % T)
    e("  v_lshl_add_u32 v%d, v%d, 4, v%d" % (VB, T, VB))
    e("  v_lshl_add_u32 v%d, v14, 4, v%d" % (VA, VA))
    nblk = 128 // NW
    e("  s_mul_i32 s31, s2, 786432")
    e("  s_mul_hi_u32 s32, s2, 786432")
    e("  s_mul_i32 s33, s2, 1536")
    if inter:
        e("  s_mul_i32 s28, s3, 6144")
        step = NW * 6144
        e("  s_mov_b32 s14, 786432")
        e("  s_mov_b32 s18, 786432")
    else:
        e("  s_mul_i32 s28, s3, %d" % (nblk * 6144))
        step = 6144
        e("  s_add_u32 s14, s28, %d" % (nblk * 6144))
        e("  s_mov_b32 s18, s14")
    e("  s_mov_b32 s15, 0x20000")
    e("  s_mov_b32 s19, 0x20000")
    e("  s_mov_b32 s22, 393216")
    e("  s_mov_b32 s23, 0x20000")
    e("  s_mov_b32 s26, 393216")
    e("  s_mov_b32 s27, 0x20000")
    e("  s_waitcnt lgkmcnt(0)")
    e("  s_mov_b32 s20, s4")
    e("  s_mov_b32 s21, s5")
    e("  s_add_u32 s12, s6, s31")
    e("  s_addc_u32 s13, s7, s32")
    e("  s_add_u32 s16, s8, s31")
    e("  s_addc_u32 s17, s9, s32")
    for s in range(6):
        e("  buffer_load_dwordx4 %s, v%d, s[20:23], s33 offen offset:%d" % (r4(Q + 4 * s), T2, 64 * s))
    def kreg(r, i): return RING + (r * 12 + i) * 4
    def vreg(r, i): return RING + (r * 12 + 6 + i) * 4
    VL = [(VA, 0), (VA, 384), (VB, 256), (VA, 768), (VA, 1152), (VB, 1024)]
    def kloads(r):
        for s in range(6):
            e("  buffer_load_dwordx4 %s, v%d, s[12:15], s28 offen offset:%d %s" % (r4(kreg(r, s)), KOFF, 64 * s, kflags))
    def vloads(r):
        for i, (vr, imm) in enumerate(VL):
            e("  buffer_load_dwordx4 %s, v%d, s[16:19], s28 offen offset:%d %s" % (r4(vreg(r, i)), vr, imm, vflags))
    for r in range(R):
        kloads(r); vloads(r)
        e("  s_add_u32 s28, s28, %d" % step)
    e("  s_mov_b32 s24, s10")
    e("  s_mov_b32 s25, s11")
    e("  s_mov_b32 s30, 0x3dd53b95                  ; log2(e)/sqrt(192)")
    e("  v_bfe_u32 v%d, v%d, 2, 2" % (T, LANE))
    e("  v_mov_b32 v%d, 0xffff" % U)
    e("  v_mov_b32 v14, 0xffff0000")
    e("  v_mov_b32 v%d, 0" % MK0)
    e("  v_mov_b32 v%d, 0" % MK1)
    for jj, (dst, src) in enumerate([(MK0, U), (MK0, 14), (MK1, U), (MK1, 14)]):
        e("  v_cmp_eq_u32 vcc, %d, v%d" % (jj, T))
        e("  s_nop 1")
        e("  v_cndmask_b32 v%d, v%d, v%d, vcc" % (dst, dst, src))
    for i in range(24):
        e("  v_mov_b32 v%d, 0" % (ACC + i))
    e("  v_mov_b32 v%d, 0xff800000" % M)
    e("  v_mov_b32 v%d, 0xff800000" % MC)
    e("  v_mov_b32 v%d, 0" % L)
    assert nblk % R == 0
    e("  s_mov_b32 s29, %d" % (nblk // R))
    e("L_loop:")
    W = 12 * R - 6
    A_, B_, C_, D_, E_, F_ = [ACC + 4 * i for i in range(6)]
    for r in range(R):
        e("  s_waitcnt vmcnt(%d)" % W)
        for s in range(6):
            e("  v_mfma_f32_16x16x32_bf16 %s, %s, %s, %s" % (r4(S), r4(kreg(r, s)), r4(Q + 4 * s), "0" if s == 0 else r4(S)))
        kloads(r)
        e("  s_nop 1")
        e("  v_max3_f32 v%d, v%d, v%d, v%d" % (T, S, S + 1, S + 2))
        e("  v_max_f32 v%d, v%d, v%d" % (T, T, S + 3))
        e("  v_mov_b32 v%d, v%d" % (U, T))
        e("  s_nop 1")
        e("  v_permlane16_swap_b32 v%d, v%d" % (T, U))
        e("  v_max_f32 v%d, v%d, v%d" % (T, T, U))
        e("  v_mov_b32 v%d, v%d" % (U, T))
        e("  s_nop 1")
        e("  v_permlane32_swap_b32 v%d, v%d" % (T, U))
        e("  v_max3_f32 v%d, v%d, v%d, v%d" % (M, T, U, M))
        e("  v_mul_f32 v%d, s30, v%d" % (T, M))
        e("  v_sub_f32 v%d, v%d, v%d" % (AL, MC, T))
        e("  v_mov_b32 v%d, v%d" % (MC, T))
        e("  v_exp_f32 v%d, v%d" % (AL, AL))
        for i in range(4):
            e("  v_fma_f32 v%d, v%d, s30, -v%d" % (P + i, S + i, T))
        for i in range(4):
            e("  v_exp_f32 v%d, v%d" % (P + i, P + i))
        for k in range(6):
            for q in range(4):
                e("  v_mul_f32_dpp v%d, v%d, v%d quad_perm:[%d,%d,%d,%d] %s" % (ACC + 4 * k + q, AL, ACC + 4 * k + q, q, q, q, q, FULL))
        e("  v_add_f32 v%d, v%d, v%d" % (T, P, P + 1))
        e("  v_add_f32 v%d, v%d, v%d" % (U, P + 2, P + 3))
        e("  v_add_f32 v%d, v%d, v%d" % (T, T, U))
        e("  v_fma_f32 v%d, v%d, v%d, v%d" % (L, L, AL, T))
        for i in range(4):
            e("  v_cvt_pk_bf16_f32 v%d, v%d, v%d" % (P + i, P + i, P + i))
        for i in range(4):
            e("  v_and_b32 v%d, v%d, v%d" % (X + 2 * i, P + i, MK0))
            e("  v_and_b32 v%d, v%d, v%d" % (X + 2 * i + 1, P + i, MK1))
        e("  s_waitcnt vmcnt(%d)" % W)
        e("  s_nop 0")
        def pv(acc, x, vb):
            e("  v_mfma_f32_16x16x16_bf16 %s, %s, %s, %s" % (r4(acc), r2(X + 2 * x), r2(vb), r4(acc)))
        for half in range(2):
            g0, g1 = 2 * half, 2 * half + 1
            v0_, v1_, w_ = vreg(r, 3 * half), vreg(r, 3 * half + 1), vreg(r, 3 * half + 2)
            pv(A_, g0, v0_); pv(B_, g0, v0_ + 2)
            pv(C_, g0, w_); pv(D_, g0, w_ + 2)
            pv(A_, g1, v1_); pv(B_, g1, v1_ + 2)
            pv(E_, g1, w_); pv(F_, g1, w_ + 2)
        vloads(r)
        e("  s_add_u32 s28, s28, %d" % step)
    e("  s_sub_u32 s29, s29, 1")
    e("  s_cmp_lg_u32 s29, 0")
    e("  s_cbranch_scc1 L_loop")
    MLB = NW * 3072
    e("  v_mov_b32 v%d, v%d" % (U, L))
    e("  s_mul_i32 s31, s3, 3072")
    e("  s_lshl_b32 s32, s3, 5")
    e("  v_permlane16_swap_b32 v%d, v%d" % (L, U))
    e("  v_add_f32 v%d, v%d, v%d" % (L, L, U))
    e("  v_mov_b32 v%d, v%d" % (U, L))
    e("  v_lshlrev_b32 v14, 4, v%d" % LANE)
    e("  v_and_b32 v15, 3, v%d" % LANE)
    e("  v_permlane32_swap_b32 v%d, v%d" % (L, U))
    e("  v_add_f32 v%d, v%d, v%d" % (L, L, U))
    e("  v_add_u32 v%d, s31, v14" % T)
    e("  v_lshlrev_b32 v15, 3, v15")
    e("  v_add_u32 v15, s32, v15")
    for q in range(4):
        e("  v_add_f32_dpp v%d, v%d, v%d row_ror:8 row_mask:0xf bank_mask:0x3" % (C_ + q, E_ + q, C_ + q))
    for q in range(4):
        e("  v_add_f32_dpp v%d, v%d, v%d row_ror:8 row_mask:0xf bank_mask:0xc" % (C_ + q, D_ + q, F_ + q))
    e("  ds_write_b128 v%d, %s" % (T, r4(A_)))
    e("  ds_write_b128 v%d, %s offset:1024" % (T, r4(B_)))
    e("  ds_write_b64 v15, %s offset:%d" % (r2(MC), MLB))
    e("  ds_write_b128 v%d, %s offset:2048" % (T, r4(C_)))
    e("  s_waitcnt lgkmcnt(0)")
    e("  s_barrier")
    e("  s_cmp_ge_u32 s3, 3")
    e("  s_cbranch_scc1 L_end")
    NJ = NW // 4
    ML = 16
    PW = 32
    e("  v_and_b32 v15, 15, v%d" % LANE)
    e("  v_lshlrev_b32 v%d, 3, v15" % T)
    for j in range(NJ):
        e("  ds_read_b64 %s, v%d offset:%d" % (r2(ML + 2 * j), T, MLB + 128 * j))
    e("  s_lshl_b32 s31, s3, 10")
    e("  v_add_u32 v14, s31, v14")
    for w in range(NW):
        e("  ds_read_b128 %s, v14 offset:%d" % (r4(PW + 4 * w), 3072 * w))
    e("  v_lshrrev_b32 v2, 4, v%d" % LANE)
    e("  v_lshl_add_u32 v3, v15, 3, v2")
    e("  s_lshl_b32 s31, s3, 2")
    e("  v_add_u32 v3, s31, v3")
    e("  v_and_b32 v4, 7, v15")
    e("  v_lshl_add_u32 v4, v4, 3, v2")
    e("  v_lshrrev_b32 v5, 3, v15")
    e("  v_lshl_add_u32 v4, v5, 2, v4")
    e("  v_add_u32 v4, 128, v4")
    e("  s_cmp_eq_u32 s3, 2")
    e("  s_cselect_b64 vcc, -1, 0")
    e("  v_cndmask_b32 v3, v3, v4, vcc")
    e("  v_lshlrev_b32 v3, 1, v3")
    e("  s_waitcnt lgkmcnt(%d)" % min(NW, 15))
    if NW > 15: e("  s_waitcnt lgkmcnt(0)")
    e("  v_mov_b32 v%d, v%d" % (M, ML))
    for j in range(1, NJ):
        e("  v_max_f32 v%d, v%d, v%d" % (M, M, ML + 2 * j))
    e("  s_nop 1")
    e("  v_max_f32_dpp v%d, v%d, v%d row_ror:4 %s" % (M, M, M, FULL))
    e("  s_nop 1")
    e("  v_max_f32_dpp v%d, v%d, v%d row_ror:8 %s" % (M, M, M, FULL))
    for j in range(NJ):
        e("  v_sub_f32 v%d, v%d, v%d" % (ML + 2 * j, ML + 2 * j, M))
    for j in range(NJ):
        e("  v_exp_f32 v%d, v%d" % (ML + 2 * j, ML + 2 * j))
    e("  s_nop 0")
    e("  v_mul_f32 v%d, v%d, v%d" % (T, ML, ML + 1))
    for j in range(1, NJ):
        e("  v_fmac_f32 v%d, v%d, v%d" % (T, ML + 2 * j, ML + 2 * j + 1))
    e("  s_nop 1")
    e("  v_add_f32_dpp v%d, v%d, v%d row_ror:4 %s" % (T, T, T, FULL))
    e("  s_nop 1")
    e("  v_add_f32_dpp v%d, v%d, v%d row_ror:8 %s" % (T, T, T, FULL))
    e("  v_rcp_f32 v%d, v%d" % (T, T))
    e("  s_nop 0")
    for j in range(NJ):
        e("  v_mul_f32 v%d, v%d, v%d" % (ML + 2 * j, ML + 2 * j, T))
    e("  s_waitcnt lgkmcnt(0)")
    e("  s_nop 0")
    O = 8
    for w in range(NW):
        for q in range(4):
            op = "v_mul_f32_dpp" if w == 0 else "v_fmac_f32_dpp"
            e("  %s v%d, v%d, v%d row_newbcast:%d %s" % (op, O + q, ML + 2 * (w >> 2), PW + 4 * w + q, 4 * (w & 3) + q, FULL))
    e("  v_cvt_pk_bf16_f32 v%d, v%d, v%d" % (O, O, O + 1))
    e("  v_cvt_pk_bf16_f32 v%d, v%d, v%d" % (O + 2, O + 2, O + 3))
    e("  buffer_store_short v%d, v3, s[24:27], s33 offen" % O)
    e("  buffer_store_short_d16_hi v%d, v3, s[24:27], s33 offen offset:384" % O)
    e("  buffer_store_short v%d, v3, s[24:27], s33 offen offset:768" % (O + 2))
    e("  buffer_store_short_d16_hi v%d, v3, s[24:27], s33 offen offset:1152" % (O + 2))
    e("L_end:")
    nv = max(RING + R * 48, PW + 4 * NW)
    nv = (nv + 7) // 8 * 8
    lds = max(NW * 3072 + NW * 32, ldsmin)
    s = HDRC + HDR % (256, NW * 64, lds) + "\n".join(o) + FTR % (nv, min(nv, 256))
    fn = path or (name + ".s")
    open(fn, "w").write(s)
    return build(fn)
if __name__ == "__main__":
    specs = []
    specs.append(gen("k_r2_nt"))
    specs.append(gen("k_r2", kflags="", vflags=""))
    specs.append(gen("k_r2_sc1nt", kflags="sc1 nt", vflags="sc1 nt"))
    specs.append(gen("k_r2_sc01nt", kflags="sc0 sc1 nt", vflags="sc0 sc1 nt"))
    specs.append(gen("k_r2_sc01", kflags="sc0 sc1", vflags="sc0 sc1"))
    specs.append(gen("k_r2_nt_c", inter=False))
    open("specs.txt", "w").write(" ".join(specs))
    print(" ".join(specs))
```

```python
import sys
from build import build
from gen import HDRC, HDR, FTR, FULL
def gen(name, NW=4, R=4, LA=2, rot=224, flags="nt", path=None, table=False):
    o = []
    e = o.append
    LANE, O0, O1, O2, MK0, MK1, M, MC, L, SADR, T, U, T2 = 1, 2, 3, 4, 5, 6, 7, 8, 9, 10, 11, 12, 13
    S, SA, P, X, VO0, SR, ACC, Q, RING = 16, 20, 22, 24, 28, 56, 32, 60, 72
    def r4(b): return "v[%d:%d]" % (b, b + 3)
    def r2(b): return "v[%d:%d]" % (b, b + 1)
    nblk = 256 // NW
    step = NW * 3072
    assert nblk % R == 0 and LA < R
    SBASE = NW * 3072 + NW * 32
    e("  s_cmp_ge_u32 s2, 256")
    e("  s_cbranch_scc1 L_end")
    e("  s_load_dwordx8 s[4:11], s[0:1], 0          ; q k v out")
    if table:
        e("  s_load_dwordx2 s[36:37], s[0:1], 32")
        e("  s_lshl_b32 s38, s2, 2")
        e("  s_add_u32 s38, s38, 8192")
        e("  s_waitcnt lgkmcnt(0)")
        e("  s_load_dword s28, s[36:37], s38")
        e("  s_waitcnt lgkmcnt(0)")
    e("  v_lshrrev_b32 v14, 6, v0")
    e("  v_and_b32 v%d, 63, v0" % LANE)
    e("  v_readfirstlane_b32 s3, v14")
    e("  v_and_b32 v14, 15, v%d                     ; n" % LANE)
    e("  v_lshrrev_b32 v15, 4, v%d                  ; g" % LANE)
    e("  v_lshrrev_b32 v%d, 1, v14" % T)
    e("  v_mul_u32_u24 v%d, 384, v%d" % (O0, T))
    e("  v_lshl_add_u32 v%d, v15, 5, v%d" % (O0, O0))
    e("  v_and_b32 v%d, 1, v14" % T)
    e("  v_lshl_add_u32 v%d, v%d, 4, v%d" % (O0, T, O0))
    e("  v_add_u32 v%d, 128, v%d" % (O1, O0))
    e("  v_add_u32 v%d, 256, v%d" % (O2, O0))
    e("  v_and_b32 v%d, 3, v14" % T)
    e("  v_mul_u32_u24 v%d, 384, v%d" % (T2, T))
    e("  v_lshl_add_u32 v%d, v15, 5, v%d" % (T2, T2))
    e("  v_bfe_u32 v%d, v14, 2, 1" % U)
    e("  v_lshl_add_u32 v%d, v%d, 4, v%d" % (T2, U, T2))
    e("  s_mul_i32 s31, s2, 786432")
    e("  s_mul_hi_u32 s32, s2, 786432")
    e("  s_mul_i32 s33, s2, 1536")
    if not table:
        e("  s_mul_i32 s28, s2, %d" % rot)
    e("  s_add_u32 s28, s28, s3")
    e("  s_and_b32 s28, s28, 255")
    e("  s_mul_i32 s28, s28, 3072")
    e("  s_mov_b32 s14, 786432")
    e("  s_mov_b32 s15, 0x20000")
    e("  s_mov_b32 s22, 393216")
    e("  s_mov_b32 s23, 0x20000")
    e("  s_waitcnt lgkmcnt(0)")
    e("  s_add_u32 s12, s6, s31")
    e("  s_addc_u32 s13, s7, s32")
    e("  s_mov_b32 s20, s4")
    e("  s_mov_b32 s21, s5")
    def reg(r, i): return RING + (r * 3 + i) * 4
    def loads(r):
        for i in range(3):
            e("  buffer_load_dwordx4 %s, v%d, s[12:15], s28 offen %s" % (r4(reg(r, i)), O0 + i, flags))
        e("  s_add_u32 s28, s28, %d" % step)
        e("  s_cmp_ge_u32 s28, 786432")
        e("  s_cselect_b32 s35, 786432, 0")
        e("  s_sub_u32 s28, s28, s35")
    loads(0)
    for s in range(3):
        e("  buffer_load_dwordx4 %s, v%d, s[20:23], s33 offen offset:%d" % (r4(Q + 4 * s), T2, 128 * s))
    for r in range(1, LA):
        loads(r)
    e("  s_add_u32 s16, s8, s31                     ; V base")
    e("  s_addc_u32 s17, s9, s32")
    e("  s_mov_b32 s24, s10")
    e("  s_mov_b32 s25, s11")
    e("  s_mov_b32 s26, 393216")
    e("  s_mov_b32 s27, 0x20000")
    e("  s_mov_b32 s30, 0x3dd53b95                  ; log2(e)/sqrt(192)")
    e("  v_lshl_add_u32 v%d, v15, 2, v%d" % (SADR, T))
    e("  v_lshlrev_b32 v%d, 3, v%d" % (SADR, SADR))
    e("  s_mul_i32 s34, s3, %d" % (nblk * 128))
    e("  s_add_u32 s34, s34, %d" % SBASE)
    e("  v_add_u32 v%d, s34, v%d" % (SADR, SADR))
    e("  v_mul_u32_u24 v%d, 768, v15" % VO0)
    e("  v_lshrrev_b32 v%d, 3, v14" % T)
    e("  v_mul_u32_u24 v%d, 384, v%d" % (T, T))
    e("  v_add_u32 v%d, v%d, v%d" % (VO0 + 2, T, VO0))
    e("  v_and_b32 v%d, 7, v14" % T)
    e("  v_lshl_add_u32 v%d, v%d, 4, v%d" % (VO0 + 2, T, VO0 + 2))
    e("  v_add_u32 v%d, 256, v%d" % (VO0 + 2, VO0 + 2))
    e("  v_lshl_add_u32 v%d, v14, 4, v%d" % (VO0, VO0))
    e("  v_add_u32 v%d, 384, v%d" % (VO0 + 1, VO0))
    e("  v_mov_b32 v%d, 0xff800000" % M)
    e("  s_mov_b32 s29, %d" % (nblk // R))
    W = 3 * (LA - 1)
    e("  s_waitcnt vmcnt(%d)" % W)
    e("L_loop:")
    for r in range(R):
        rn = (r + LA) % R
        e("  s_waitcnt vmcnt(%d)" % W)
        if r == R - LA:
            e("  s_cmp_lg_u32 s29, 1")
            e("  s_cbranch_scc1 L_nosw")
            e("  s_mov_b32 s12, s16")
            e("  s_mov_b32 s13, s17")
            for i in range(3):
                e("  v_mov_b32 v%d, v%d" % (O0 + i, VO0 + i))
            e("L_nosw:")
        loads(rn)
        for s in range(3):
            e("  v_mfma_f32_16x16x32_bf16 %s, %s, %s, %s" % (r4(S), r4(reg(r, s)), r4(Q + 4 * s), "0" if s == 0 else r4(S)))
        e("  s_nop 7")
        e("  v_add_f32_dpp v%d, v%d, v%d row_ror:4 row_mask:0xf bank_mask:0x5" % (SA, S + 1, S))
        e("  v_add_f32_dpp v%d, v%d, v%d row_ror:4 row_mask:0xf bank_mask:0x5" % (SA + 1, S + 3, S + 2))
        e("  v_add_f32_dpp v%d, v%d, v%d row_ror:4 row_mask:0xf bank_mask:0xa" % (SA, S, S + 1))
        e("  v_add_f32_dpp v%d, v%d, v%d row_ror:4 row_mask:0xf bank_mask:0xa" % (SA + 1, S + 2, S + 3))
        e("  v_max3_f32 v%d, v%d, v%d, v%d" % (M, SA, SA + 1, M))
        e("  ds_write_b64 v%d, %s offset:%d" % (SADR, r2(SA), 128 * r))
    e("  v_add_u32 v%d, %d, v%d" % (SADR, 128 * R, SADR))
    e("  s_sub_u32 s29, s29, 1")
    e("  s_cmp_lg_u32 s29, 0")
    e("  s_cbranch_scc1 L_loop")
    e("  v_subrev_u32 v%d, %d, v%d" % (SADR, nblk * 128, SADR))
    e("  v_mov_b32 v%d, v%d" % (U, M))
    e("  ds_read_b64 %s, v%d" % (r2(SR), SADR))
    e("  v_bfe_u32 v%d, v%d, 2, 2" % (T, LANE))
    e("  v_permlane16_swap_b32 v%d, v%d" % (M, U))
    e("  v_max_f32 v%d, v%d, v%d" % (M, M, U))
    e("  v_mov_b32 v%d, v%d" % (U, M))
    e("  v_mov_b32 v14, 0xffff")
    e("  v_mov_b32 v15, 0xffff0000")
    e("  v_permlane32_swap_b32 v%d, v%d" % (M, U))
    e("  v_max_f32 v%d, v%d, v%d" % (M, M, U))
    e("  v_mul_f32 v%d, s30, v%d" % (MC, M))
    e("  v_mov_b32 v%d, 0" % MK0)
    e("  v_mov_b32 v%d, 0" % MK1)
    for jj, (dst, src) in enumerate([(MK0, 14), (MK0, 15), (MK1, 14), (MK1, 15)]):
        e("  v_cmp_eq_u32 vcc, %d, v%d" % (jj, T))
        e("  v_mov_b32 v%d, 0" % (ACC + 2 * jj))
        e("  v_mov_b32 v%d, 0" % (ACC + 2 * jj + 1))
        e("  v_cndmask_b32 v%d, v%d, v%d, vcc" % (dst, dst, src))
    for i in range(8, 24):
        e("  v_mov_b32 v%d, 0" % (ACC + i))
    e("  v_mov_b32 v%d, 0" % L)
    e("  s_mov_b32 s29, %d" % (nblk // R))
    e("L_loop2:")
    A_, B_, C_, D_, E_, F_ = [ACC + 4 * i for i in range(6)]
    for r in range(R):
        rn = (r + LA) % R
        cur = SR + 2 * (r & 1); nxt = SR + 2 * ((r + 1) & 1)
        e("  s_waitcnt lgkmcnt(0)")
        e("  ds_read_b64 %s, v%d offset:%d" % (r2(nxt), SADR, 128 * (r + 1)))
        for i in range(2):
            e("  v_fma_f32 v%d, v%d, s30, -v%d" % (P + i, cur + i, MC))
        for i in range(2):
            e("  v_exp_f32 v%d, v%d" % (P + i, P + i))
        e("  s_nop 0")
        e("  v_add_f32 v%d, v%d, v%d" % (T, P, P + 1))
        for i in range(2):
            e("  v_cvt_pk_bf16_f32 v%d, v%d, v%d" % (P + i, P + i, P + i))
        e("  v_add_f32 v%d, v%d, v%d" % (L, L, T))
        for i in range(2):
            e("  v_and_b32 v%d, v%d, v%d" % (X + 2 * i, P + i, MK0))
            e("  v_and_b32 v%d, v%d, v%d" % (X + 2 * i + 1, P + i, MK1))
        if r == R - LA:
            e("  s_cmp_eq_u32 s29, 1")
            e("  s_cselect_b32 s14, 0, s14")
        e("  s_waitcnt vmcnt(%d)" % W)
        loads(rn)
        def pv(acc, x, vb):
            e("  v_mfma_f32_16x16x16_bf16 %s, %s, %s, %s" % (r4(acc), r2(X + 2 * x), r2(vb), r4(acc)))
        v0_, v1_, w_ = reg(r, 0), reg(r, 1), reg(r, 2)
        pv(A_, 0, v0_); pv(B_, 0, v0_ + 2)
        pv(C_, 0, w_); pv(D_, 0, w_ + 2)
        pv(A_, 1, v1_); pv(B_, 1, v1_ + 2)
        pv(E_, 1, w_); pv(F_, 1, w_ + 2)
    e("  v_add_u32 v%d, %d, v%d" % (SADR, 128 * R, SADR))
    e("  s_sub_u32 s29, s29, 1")
    e("  s_cmp_lg_u32 s29, 0")
    e("  s_cbranch_scc1 L_loop2")
    MLB = NW * 3072
    e("  v_mov_b32 v%d, v%d" % (U, L))
    e("  s_mul_i32 s31, s3, 3072")
    e("  s_lshl_b32 s32, s3, 5")
    e("  v_permlane16_swap_b32 v%d, v%d" % (L, U))
    e("  v_add_f32 v%d, v%d, v%d" % (L, L, U))
    e("  v_mov_b32 v%d, v%d" % (U, L))
    e("  v_lshlrev_b32 v14, 4, v%d" % LANE)
    e("  v_and_b32 v15, 3, v%d" % LANE)
    e("  v_permlane32_swap_b32 v%d, v%d" % (L, U))
    e("  v_add_f32 v%d, v%d, v%d" % (L, L, U))
    e("  v_add_u32 v%d, s31, v14" % T)
    e("  v_lshlrev_b32 v15, 3, v15")
    e("  v_add_u32 v15, s32, v15")
    for q in range(4):
        e("  v_add_f32_dpp v%d, v%d, v%d row_ror:8 row_mask:0xf bank_mask:0x3" % (C_ + q, E_ + q, C_ + q))
    for q in range(4):
        e("  v_add_f32_dpp v%d, v%d, v%d row_ror:8 row_mask:0xf bank_mask:0xc" % (C_ + q, D_ + q, F_ + q))
    e("  ds_write_b128 v%d, %s" % (T, r4(A_)))
    e("  ds_write_b128 v%d, %s offset:1024" % (T, r4(B_)))
    e("  ds_write_b64 v15, %s offset:%d" % (r2(MC), MLB))
    e("  ds_write_b128 v%d, %s offset:2048" % (T, r4(C_)))
    NJ = NW // 4
    ML = 16
    PW = 32
    if PW + 4 * NW > RING:
        e("  s_waitcnt vmcnt(0) lgkmcnt(0)")
    else:
        e("  s_waitcnt lgkmcnt(0)")
    e("  s_barrier")
    e("  s_cmp_ge_u32 s3, 3")
    e("  s_cbranch_scc1 L_end")
    e("  v_and_b32 v15, 15, v%d" % LANE)
    e("  v_lshlrev_b32 v%d, 3, v15" % T)
    for j in range(NJ):
        e("  ds_read_b64 %s, v%d offset:%d" % (r2(ML + 2 * j), T, MLB + 128 * j))
    e("  s_lshl_b32 s31, s3, 10")
    e("  v_add_u32 v14, s31, v14")
    for w in range(NW):
        e("  ds_read_b128 %s, v14 offset:%d" % (r4(PW + 4 * w), 3072 * w))
    e("  v_lshrrev_b32 v2, 4, v%d" % LANE)
    e("  v_lshl_add_u32 v3, v15, 3, v2")
    e("  s_lshl_b32 s31, s3, 2")
    e("  v_add_u32 v3, s31, v3")
    e("  v_and_b32 v4, 7, v15")
    e("  v_lshl_add_u32 v4, v4, 3, v2")
    e("  v_lshrrev_b32 v5, 3, v15")
    e("  v_lshl_add_u32 v4, v5, 2, v4")
    e("  v_add_u32 v4, 128, v4")
    e("  s_cmp_eq_u32 s3, 2")
    e("  s_cselect_b64 vcc, -1, 0")
    e("  v_cndmask_b32 v3, v3, v4, vcc")
    e("  v_lshlrev_b32 v3, 1, v3")
    e("  s_waitcnt lgkmcnt(%d)" % (NW if NW <= 15 else 0))
    e("  v_mov_b32 v%d, v%d" % (M, ML))
    for j in range(1, NJ):
        e("  v_max_f32 v%d, v%d, v%d" % (M, M, ML + 2 * j))
    e("  s_nop 1")
    e("  v_max_f32_dpp v%d, v%d, v%d row_ror:4 %s" % (M, M, M, FULL))
    e("  s_nop 1")
    e("  v_max_f32_dpp v%d, v%d, v%d row_ror:8 %s" % (M, M, M, FULL))
    for j in range(NJ):
        e("  v_sub_f32 v%d, v%d, v%d" % (ML + 2 * j, ML + 2 * j, M))
    for j in range(NJ):
        e("  v_exp_f32 v%d, v%d" % (ML + 2 * j, ML + 2 * j))
    e("  s_nop 0")
    e("  v_mul_f32 v%d, v%d, v%d" % (T, ML, ML + 1))
    for j in range(1, NJ):
        e("  v_fmac_f32 v%d, v%d, v%d" % (T, ML + 2 * j, ML + 2 * j + 1))
    e("  s_nop 1")
    e("  v_add_f32_dpp v%d, v%d, v%d row_ror:4 %s" % (T, T, T, FULL))
    e("  s_nop 1")
    e("  v_add_f32_dpp v%d, v%d, v%d row_ror:8 %s" % (T, T, T, FULL))
    e("  v_rcp_f32 v%d, v%d" % (T, T))
    e("  s_nop 0")
    for j in range(NJ):
        e("  v_mul_f32 v%d, v%d, v%d" % (ML + 2 * j, ML + 2 * j, T))
    e("  s_waitcnt lgkmcnt(0)")
    e("  s_nop 0")
    O = 8
    for w in range(NW):
        for q in range(4):
            op = "v_mul_f32_dpp" if w == 0 else "v_fmac_f32_dpp"
            e("  %s v%d, v%d, v%d row_newbcast:%d %s" % (op, O + q, ML + 2 * (w >> 2), PW + 4 * w + q, 4 * (w & 3) + q, FULL))
    e("  v_cvt_pk_bf16_f32 v%d, v%d, v%d" % (O, O, O + 1))
    e("  v_cvt_pk_bf16_f32 v%d, v%d, v%d" % (O + 2, O + 2, O + 3))
    e("  buffer_store_short v%d, v3, s[24:27], s33 offen" % O)
    e("  buffer_store_short_d16_hi v%d, v3, s[24:27], s33 offen offset:384" % O)
    e("  buffer_store_short v%d, v3, s[24:27], s33 offen offset:768" % (O + 2))
    e("  buffer_store_short_d16_hi v%d, v3, s[24:27], s33 offen offset:1152" % (O + 2))
    e("L_end:")
    nv = max(RING + R * 12, PW + 4 * NW)
    nv = (nv + 7) // 8 * 8
    lds = SBASE + 256 * 128 + 128
    s = HDRC + HDR % (256, NW * 64, lds) + "\n".join(o) + FTR % (nv, min(nv, 256))
    fn = path or (name + ".s")
    open(fn, "w").write(s)
    return build(fn)
if __name__ == "__main__":
    specs = []
    specs.append(gen("c_w4l2"))
    specs.append(gen("c_w4l3", LA=3))
    specs.append(gen("c_w8l1", NW=8, LA=1))
    specs.append(gen("c_w8l2", NW=8, LA=2))
    specs.append(gen("c_w4l2_r0", rot=256))
    specs.append("a_w4_r224.co,standalone__mha_softmax__sampling_kernel,256,256,12416")
    specs.append("a_w4.co,standalone__mha_softmax__sampling_kernel,256,256,12416")
    open("specs.txt", "w").write(" ".join(specs))
    print(" ".join('"work/%s"' % s.split(",")[0] for s in specs).replace(" ", ", "))
```

```python
import re
from build import build
def mk(src, dst, NW, ins_a, ins_b, op="mean", scale=10):
    s = open(src).read()
    s = s.replace("  s_cbranch_scc1 L_end\n", "  s_cbranch_scc1 L_end\n  s_memrealtime s[64:65]\n  s_load_dwordx2 s[70:71], s[0:1], 32\n", 1)
    def put(s, ins, reg, tag):
        anchor, where, cond = ins
        code = "  s_memrealtime s[%d:%d]\n  s_waitcnt lgkmcnt(0)\n" % (reg, reg + 1)
        if cond is not None:
            code = "  s_cmp_lg_u32 s29, %d\n  s_cbranch_scc1 L_ns%s\n" % (cond, tag) + code + "L_ns%s:\n" % tag
        assert s.count(anchor) == 1, (anchor, s.count(anchor))
        return s.replace(anchor, code + anchor if where == "before" else anchor + code)
    if ins_a is None:
        s = s.replace("L_loop:\n", "  s_mov_b32 s72, s64\nL_loop:\n", 1) if "s_branch L_first" not in s else s.replace("  s_branch L_first\n", "  s_mov_b32 s72, s64\n  s_branch L_first\n")
    else:
        s = put(s, ins_a, 72, "a")
    s = put(s, ins_b, 74, "b")
    nw = 256 * NW; sh = nw.bit_length() - 1
    if op == "mean":
        a = "  s_atomic_add s76, s[70:71], 0\n"; rd = "  s_mov_b32 s76, 0\n  s_atomic_add s76, s[70:71], 0 glc\n  s_waitcnt lgkmcnt(0)\n  s_mul_i32 s76, s76, %d\n  s_lshr_b32 s76, s76, %d\n" % (scale, sh)
    else:
        a = "  s_atomic_umax s76, s[70:71], 0\n"; rd = "  s_mov_b32 s76, 0\n  s_atomic_add s76, s[70:71], 0 glc\n  s_waitcnt lgkmcnt(0)\n  s_mul_i32 s76, s76, %d\n" % scale
    def spin(lbl): return "%s:\n  s_memrealtime s[66:67]\n  s_waitcnt lgkmcnt(0)\n  s_sub_u32 s68, s66, s77\n  s_cmp_lt_i32 s68, 0\n  s_cbranch_scc1 %s\n" % (lbl, lbl)
    fin = "L_fin:\n  s_add_u32 s77, s64, 6600\n" + spin("L_spin0") + "  s_sub_u32 s76, s74, s72\n" + a + "  s_waitcnt lgkmcnt(0)\n  s_or_b32 s78, s2, s3\n  s_cmp_lg_u32 s78, 0\n  s_cbranch_scc1 L_end\n  s_add_u32 s77, s64, 11000\n" + spin("L_spin1") + rd + "  s_add_u32 s77, s64, 12000\n  s_add_u32 s77, s77, s76\n" + spin("L_spin2") + "L_end:\n"
    s = s.replace("L_end:\n", fin)
    s = s.replace("  s_barrier\n  s_cbranch_scc1 L_end", "  s_barrier\n  s_cbranch_scc1 L_fin")
    s = re.sub(r"\.amdhsa_next_free_sgpr \d+", ".amdhsa_next_free_sgpr 88", s)
    open(dst, "w").write(s)
    return build(dst)
if __name__ == "__main__":
    src = "f_w4_iq.s"
    sp = []
    sp.append(mk(src, "h2_trans.s", 4, ("  s_cbranch_scc1 L_loop\n", "after", None), ("L_loop2:\n", "after", 16)))
    sp.append(mk(src, "h2_trans1.s", 4, ("  s_cbranch_scc1 L_loop\n", "after", None), ("L_loop2:\n", "after", 15)))
    sp.append(mk(src, "h2_trip.s", 4, ("L_loop2:\n", "after", 9), ("  s_sub_u32 s29, s29, 1\n  s_cmp_lg_u32 s29, 0\n  s_cbranch_scc1 L_loop2\n", "before", 9)))
    sp.append(mk(src, "h2_first.s", 4, None, ("L_loop:\n", "after", 15)))
    sp.append(mk(src, "h2_transmax.s", 4, ("  s_cbranch_scc1 L_loop\n", "after", None), ("L_loop2:\n", "after", 16), op="max"))
    open("specs.txt", "w").write(" ".join(sp)); print(sp)
```
